```python
import torch

def _softmax(x, axis=-1):
    return torch.softmax(x, dim=axis)
def _gelu(x):
    return torch.nn.functional.gelu(x, approximate="tanh")
def _silu(x):
    return torch.nn.functional.silu(x)
def _sigmoid(x):
    return torch.sigmoid(x)
def _layernorm(x, axis=-1, eps=1e-5):
    m = x.mean(dim=axis, keepdim=True)
    v = x.var(dim=axis, keepdim=True, unbiased=False)
    return (x - m) / torch.sqrt(v + eps)
def _scatter_add(tgt, idx, src, axis=0):
    return tgt.clone().index_add_(axis, idx, src)
def _segment_sum(src, seg, n):
    out = torch.zeros((n,) + src.shape[1:], dtype=src.dtype)
    return out.index_add_(0, seg, src)
def _pad(x, pw):
    flat = tuple(v for pair in reversed(pw) for v in pair)
    return torch.nn.functional.pad(x, flat)

kernel_name = 'gated_mix__sliding_block_cached__dense_activation_squared_relu__decode'

def setup_inputs():

    _w = (lambda a: (lambda t: t.to(torch.bfloat16) if t.is_floating_point() else t)(torch.as_tensor(a)))
    def _A_setup():
        B, Sq, D = 1, 1, 448
        Hq, Hkv, Sk, Dh = 16, 8, 65536, 256
        assert Hq % Hkv == 0, (Hq, Hkv)
        return {
            "x": _w((lambda *s: torch.randn(*s, dtype=torch.bfloat16) * 0.05)(B, Sq, D)),
            "k_cache": _w((lambda *s: torch.randn(*s, dtype=torch.bfloat16) * 3.2)(B, Hkv, Sk, Dh)),
            "v_cache": _w((lambda *s: torch.randn(*s, dtype=torch.bfloat16) * 1.6)(B, Hkv, Sk, Dh)),
            "wq": _w((lambda *s: torch.randn(*s, dtype=torch.bfloat16) * 3.2)(D, Hq * Dh) * (D ** -0.5)),
            "wo": _w((lambda *s: torch.randn(*s, dtype=torch.bfloat16) * 1.6)(Hq * Dh, D) * ((Hq * Dh) ** -0.5)),
        }
    _A_in = _A_setup()

    def _B_setup():
        B, S, D, F = 1, 1, 448, 1792
        return {
            "x": _w((lambda *s: torch.randn(*s, dtype=torch.bfloat16) * 0.05)(B, S, D)),
            "w1": _w((lambda *s: torch.randn(*s, dtype=torch.bfloat16) * 0.1)(D, F)),
            "b1": _w((lambda *s: torch.randn(*s, dtype=torch.bfloat16) * 0.05)(F)),
            "w2": _w((lambda *s: torch.randn(*s, dtype=torch.bfloat16) * 0.05)(F, D)),
            "b2": _w((lambda *s: torch.randn(*s, dtype=torch.bfloat16) * 0.05)(D)),
        }
    _B_in = _B_setup()

    return {
        "A_x": _A_in["x"],
        "A_k_cache": _A_in["k_cache"],
        "A_v_cache": _A_in["v_cache"],
        "A_wq": _A_in["wq"],
        "A_wo": _A_in["wo"],
        "B_x": _B_in["x"],
        "B_w1": _B_in["w1"],
        "B_b1": _B_in["b1"],
        "B_w2": _B_in["w2"],
        "B_b2": _B_in["b2"],
        "gate_w": _w((lambda *s: torch.randn(*s, dtype=torch.bfloat16) * 0.05)(448) * 16.0),
    }

def reference(A_x, A_k_cache, A_v_cache, A_wq, A_wo, B_x, B_w1, B_b1, B_w2, B_b2, gate_w):
    def _A_ref(x, k_cache, v_cache, wq, wo):
        B, Sq, D = x.shape
        Hq, Dh = 16, 256
        Hkv, Sk = k_cache.shape[1], k_cache.shape[2]
        W = min(4096, max(256, Sk // 4))
        rep = Hq // Hkv
        q = (lambda x, *d: x.permute(*d))((x @ wq).reshape(B, Sq, Hq, Dh), 0, 2, 1, 3)
        k = (lambda x, n, axis: torch.repeat_interleave(x, n, dim=axis))(k_cache[:, :, Sk - W:, :], rep, axis=1)
        v = (lambda x, n, axis: torch.repeat_interleave(x, n, dim=axis))(v_cache[:, :, Sk - W:, :], rep, axis=1)
        scores = torch.einsum("bhqd,bhkd->bhqk", q, k) * (Dh ** -0.5)
        p = _softmax(scores, axis=-1)
        o = torch.einsum("bhqk,bhkd->bhqd", p, v)
        return (lambda x, *d: x.permute(*d))(o, 0, 2, 1, 3).reshape(B, Sq, Hq * Dh) @ wo

    def _B_ref(x, w1, b1, w2, b2):
        h = torch.einsum("bsd,df->bsf", x, w1) + b1
        zero = torch.zeros_like(h)
        r = torch.where(h > zero, h, zero)
        h = r * r
        out = torch.einsum("bsf,fd->bsd", h, w2) + b2
        return out

    x = A_x
    g = _sigmoid((x * gate_w).sum(-1, keepdims=True))
    a = _A_ref(x, A_k_cache, A_v_cache, A_wq, A_wo)
    b = _B_ref(x, B_w1, B_b1, B_w2, B_b2)
    return g * a + (1 - g) * b
```

```python
import sys, argparse

KN = "gated_mix__sliding_block_cached__dense_activation_squared_relu__decode_kernel"

WS_EPOCH = 0
WS_MB1 = 4096
WS_MB2 = 65536
WS_ST = WS_MB2 + (1 << 20)
WS_MB3 = 2 << 20
WS_STAMP = 512 << 20
L_K = 0
L_V = 65536
L_Q = 131072
L_SC = L_Q + 1024
L_FB = L_SC + 1024
L_G = L_FB + 1792
L_WQ = L_G + 64
L_W1 = L_WQ + 14336
L_X = L_W1 + 7168
L_GW = L_X + 1024
L_END = L_GW + 1024

SPIN_MAX = 2000000


class G:
    def __init__(self):
        self.L = []

    def __call__(self, s):
        self.L.append("    " + s)

    def label(self, s):
        self.L.append(s + ":")

    def nop(self, n):
        while n > 0:
            k = min(n, 16)
            self(f"s_nop {k-1}")
            n -= k


def red_xor16_32(g, op, v, t):
    g(f"v_mov_b32 v{t}, v{v}")
    g.nop(2)
    g(f"v_permlane16_swap_b32 v{v}, v{t}")
    g.nop(1)
    g(f"{op} v{v}, v{v}, v{t}")
    g(f"v_mov_b32 v{t}, v{v}")
    g.nop(2)
    g(f"v_permlane32_swap_b32 v{v}, v{t}")
    g.nop(1)
    g(f"{op} v{v}, v{v}, v{t}")


def red_multi(g, op, vs, ts, steps):
    dpp = {"q1": "quad_perm:[1,0,3,2]", "q2": "quad_perm:[2,3,0,1]", "r4": "row_ror:4", "r8": "row_ror:8"}
    for st in steps:
        if st in dpp:
            if len(vs) < 3:
                g.nop(2)
            else:
                g.nop(1)
            for v in vs:
                g(f"{op}_dpp v{v}, v{v}, v{v} {dpp[st]} row_mask:0xf bank_mask:0xf")
        else:
            ins = "v_permlane16_swap_b32" if st == "p16" else "v_permlane32_swap_b32"
            for v, t in zip(vs, ts):
                g(f"v_mov_b32 v{t}, v{v}")
            g.nop(2)
            for v, t in zip(vs, ts):
                g(f"{ins} v{v}, v{t}")
            g.nop(1)
            for v, t in zip(vs, ts):
                g(f"{op} v{v}, v{v}, v{t}")


def gen(inflight=4, stamps=False, mb3_reader=True, wnt="", nostream=False, prio=3, sleep2=0):
    g = G()
    hdr = []
    hdr.append(f"; @launch grid=(256,1,1) block=(768,1,1) lds={L_END}")
    hdr.append('.amdgcn_target "amdgcn-amd-amdhsa--gfx950"')
    hdr.append(".text")
    hdr.append(f".globl {KN}")
    hdr.append(".p2align 8")
    hdr.append(f".type {KN},@function")
    hdr.append(f"{KN}:")

    NST = 16

    def stamp(i):
        if stamps:
            g(f"s_memrealtime s[{64+2*i}:{65+2*i}]")
            if i != 0:
                g("s_waitcnt lgkmcnt(0)")

    def stamp_flush(idxs):
        if not stamps:
            return
        g("s_waitcnt lgkmcnt(0)")
        g(f"s_mul_i32 s98, s2, {8*NST}")
        g(f"s_add_u32 s98, s98, {WS_STAMP}")
        g("v_mov_b32 v120, s98")
        g("s_mov_b64 s[100:101], exec")
        g("s_mov_b64 exec, 1")
        for i in idxs:
            g(f"v_mov_b32 v122, s{64+2*i}")
            g(f"v_mov_b32 v123, s{65+2*i}")
            g(f"global_store_dwordx2 v120, v[122:123], s[42:43] offset:{8*i}")
            g.nop(2)
        g("s_mov_b64 exec, s[100:101]")

    stamp(0)
    g("s_cmp_ge_u32 s2, 256")
    g("s_cbranch_scc1 L_end")
    g("s_load_dwordx16 s[16:31], s[0:1], 0")
    g("s_load_dwordx8 s[32:39], s[0:1], 64")
    g("s_load_dwordx4 s[40:43], s[0:1], 96")
    g("v_lshrrev_b32 v1, 6, v0")
    g("v_and_b32 v0, 63, v0")
    g("s_and_b32 s4, s2, 7")
    g("s_lshr_b32 s5, s2, 3")
    g("v_readfirstlane_b32 s3, v1")
    g("s_cmp_ge_u32 s3, 8")
    g("s_cbranch_scc1 L_aux")

    g("v_lshrrev_b32 v2, 5, v0")
    g("v_and_b32 v3, 31, v0")
    g("v_xor_b32 v4, v3, v2")
    g("v_lshlrev_b32 v4, 4, v4")
    g("v_lshl_add_u32 v4, v2, 9, v4")
    g("s_lshl_b32 s6, s3, 13")
    g("v_add_u32 v4, s6, v4")
    g("s_lshl_b32 s7, s3, 1")
    g("v_add_u32 v5, s7, v2")
    g("v_and_b32 v6, 7, v5")
    g("v_lshlrev_b32 v6, 1, v6")
    g("v_xor_b32 v6, v3, v6")
    g("v_lshlrev_b32 v6, 4, v6")
    g("v_lshl_add_u32 v6, v5, 9, v6")
    g("s_lshl_b32 s8, s4, 25")
    g("s_lshl_b32 s9, s5, 16")
    g("s_add_u32 s8, s8, s9")
    g(f"s_add_u32 s8, s8, {(65536-4096)*512}")
    g("s_lshl_b32 s10, s3, 10")
    g(f"s_add_u32 s10, s10, {L_V}")
    g("s_waitcnt lgkmcnt(0)")
    g("s_load_dwordx2 s[44:45], s[42:43], 0")
    g("s_mov_b32 s48, s18"); g("s_mov_b32 s49, s19"); g("s_mov_b32 s50, 0x10000000"); g("s_mov_b32 s51, 0x20000")
    g("s_mov_b32 s52, s20"); g("s_mov_b32 s53, s21"); g("s_mov_b32 s54, 0x10000000"); g("s_mov_b32 s55, 0x20000")
    g("s_cmp_eq_u32 s3, 7")
    g("s_cbranch_scc1 L_s7pre")
    g("s_mov_b32 s56, s22"); g("s_mov_b32 s57, s23"); g(f"s_mov_b32 s58, {448*8192}"); g("s_mov_b32 s59, 0x20000")
    g("s_mov_b32 s60, s28"); g("s_mov_b32 s61, s29"); g(f"s_mov_b32 s62, {448*3584}"); g("s_mov_b32 s63, 0x20000")
    g("v_lshrrev_b32 v8, 1, v0")
    g("v_and_b32 v9, 1, v0")
    g("v_lshlrev_b32 v8, 13, v8")
    g("v_lshl_add_u32 v8, v9, 4, v8")
    g("s_lshl_b32 s11, s4, 10")
    g("s_lshl_b32 s12, s5, 5")
    g("s_add_u32 s11, s11, s12")
    g("s_lshl_b32 s12, s3, 19")
    g("s_add_u32 s11, s11, s12")
    g("s_lshl_b32 s12, s3, 11")
    g(f"s_add_u32 m0, s12, {L_WQ}")
    g("v_mul_u32_u24 v9, 3584, v0")
    g(f"buffer_load_dwordx4 v8, s[56:59], s11 offen{wnt} lds")
    g(f"s_add_u32 m0, s12, {L_WQ+1024}")
    g("s_add_u32 s11, s11, 262144")
    g(f"buffer_load_dwordx4 v8, s[56:59], s11 offen{wnt} lds")
    g("s_mul_i32 s11, s4, 28")
    g("s_add_u32 s11, s11, s5")
    g("s_cmp_lt_u32 s5, 28")
    g("s_cselect_b32 s11, s11, 0")
    g("s_lshl_b32 s11, s11, 4")
    g(f"s_mul_i32 s12, s3, {64*3584}")
    g("s_add_u32 s11, s11, s12")
    g("s_lshl_b32 s12, s3, 10")
    g(f"s_add_u32 m0, s12, {L_W1}")
    g("s_nop 0")
    g(f"buffer_load_dwordx4 v9, s[60:63], s11 offen{wnt} lds")
    g("s_branch L_spre_done")
    g.label("L_s7pre")
    g("s_mov_b32 s56, s16"); g("s_mov_b32 s57, s17"); g("s_mov_b32 s58, 896"); g("s_mov_b32 s59, 0x20000")
    g("s_mov_b32 s60, s36"); g("s_mov_b32 s61, s37"); g("s_mov_b32 s62, 896"); g("s_mov_b32 s63, 0x20000")
    g("v_lshlrev_b32 v8, 4, v0")
    g(f"s_mov_b32 m0, {L_X}")
    g("s_nop 0")
    g("buffer_load_dwordx4 v8, s[56:59], 0 offen lds")
    g(f"s_mov_b32 m0, {L_GW}")
    g("s_nop 0")
    g("buffer_load_dwordx4 v8, s[60:63], 0 offen lds")
    g("buffer_load_dwordx4 v8, s[60:63], 0 offen lds")
    g.label("L_spre_done")
    cnt = 0
    for n in range(8):
        if cnt == inflight:
            g(f"s_waitcnt vmcnt({inflight})")
            g("s_barrier")
        if cnt >= inflight:
            g(f"s_waitcnt vmcnt({inflight-1})")
        if n % 4 == 0:
            g(f"s_add_u32 m0, s6, {(n//4)*4096}")
            g(f"s_add_u32 s11, s8, {(n//4)*4096}")
        g(f"v_xor_b32 v7, {32*n}, v4")
        if not nostream or n < inflight:
            g(f"buffer_load_dwordx4 v7, s[48:51], s11 offen offset:{(n%4)*1024} nt lds")
        cnt += 1
    for n in range(8):
        if cnt >= inflight:
            g(f"s_waitcnt vmcnt({inflight-1})")
        g(f"s_add_u32 m0, s10, {n*8192}")
        g(f"s_add_u32 s11, s8, {n*8192}")
        if not nostream:
            g(f"buffer_load_dwordx4 v6, s[52:55], s11 offen nt lds")
        cnt += 1
    g("v_and_b32 v13, 15, v0")
    g("v_lshrrev_b32 v14, 4, v0")
    for s in range(4):
        g(f"v_add_u32 v{8+s}, {4*s}, v14")
        g(f"v_xor_b32 v{8+s}, v{8+s}, v13")
        g(f"v_lshlrev_b32 v{8+s}, 4, v{8+s}")
        g(f"v_lshl_add_u32 v{8+s}, v13, 9, v{8+s}")
        g(f"v_add_u32 v{8+s}, s6, v{8+s}")
    g("v_and_b32 v15, 1, v13")
    g("v_lshlrev_b32 v12, 9, v15")
    g("v_lshl_add_u32 v12, v14, 4, v12")
    g(f"v_add_u32 v12, {L_Q}, v12")
    g("v_lshlrev_b32 v96, 9, v15")
    g("v_lshl_add_u32 v96, v14, 4, v96")
    g("s_lshl_b32 s12, s3, 6")
    g(f"s_add_u32 s12, s12, {L_SC}")
    g("v_add_u32 v96, s12, v96")
    g("v_bfe_u32 v97, v13, 1, 1")
    g("v_lshlrev_b32 v97, 7, v97")
    g("v_lshl_add_u32 v97, v15, 9, v97")
    g("v_lshl_add_u32 v97, v14, 4, v97")
    g(f"v_add_u32 v97, {L_SC}, v97")
    g("v_lshrrev_b32 v98, 2, v13")
    g("v_lshl_add_u32 v99, v14, 2, v98")
    g("v_and_b32 v100, 7, v99")
    g("v_and_b32 v101, 3, v13")
    for ct in range(2):
        g(f"s_add_u32 s13, s7, {ct}")
        g(f"v_xor_b32 v{102+ct}, s13, v100")
        g(f"v_lshlrev_b32 v{102+ct}, 5, v{102+ct}")
        g(f"v_lshl_add_u32 v{102+ct}, v99, 9, v{102+ct}")
        g(f"v_lshl_add_u32 v{102+ct}, v101, 3, v{102+ct}")
        g(f"v_add_u32 v{102+ct}, {L_V}, v{102+ct}")
    g("s_lshl_b32 s13, s4, 1")
    g("v_add_u32 v104, s13, v14")
    g("v_lshlrev_b32 v104, 4, v104")
    g("v_lshrrev_b32 v105, 3, v13")
    g("v_add3_u32 v104, v104, v105, s7")
    g("v_lshlrev_b32 v104, 5, v104")
    g("v_add_u32 v104, s5, v104")
    g("v_lshlrev_b32 v104, 7, v104")
    g("v_and_b32 v105, 7, v13")
    g("v_lshl_add_u32 v104, v105, 4, v104")
    g(f"v_add_u32 v104, {WS_MB2}, v104")
    g("v_add_u32 v105, s13, v15")
    g("v_lshlrev_b32 v105, 5, v105")
    g("v_add_u32 v105, s5, v105")
    g("v_lshlrev_b32 v105, 4, v105")
    g(f"v_add_u32 v105, {WS_ST}, v105")
    g("v_cmp_gt_u32 s[56:57], 32, v0")
    g("v_cmp_eq_u32 s[58:59], 1, v14")
    g.nop(1)
    g("v_cndmask_b32 v104, v105, v104, s[56:57]")
    g("s_mov_b32 s60, -1")
    g("s_cmp_eq_u32 s3, 0")
    g("s_cselect_b32 s61, 3, 0")
    g("s_waitcnt lgkmcnt(0)")
    g("s_add_u32 s44, s44, 1")
    g("s_addc_u32 s45, s45, 0")
    g("v_mov_b32 v110, s44")
    g("v_mov_b32 v111, s45")
    g("s_mov_b32 s14, 0x3db8aa3b")
    stamp(1)
    g("s_barrier")
    stamp(2)
    for s in range(8):
        g(f"ds_read_b128 v[{16+4*s}:{19+4*s}], v{8+(s&3)} offset:{256*(s>>2)}")
        g(f"ds_read_b128 v[{48+4*s}:{51+4*s}], v12 offset:{64*s}")
    for s in range(8):
        g(f"s_waitcnt lgkmcnt({14-2*s})")
        c = "0" if s == 0 else "v[80:83]"
        g(f"v_mfma_f32_16x16x32_bf16 v[80:83], v[{16+4*s}:{19+4*s}], v[{48+4*s}:{51+4*s}], {c}")
    g("v_cmp_gt_u32 vcc, 2, v13")
    g("s_and_saveexec_b64 s[62:63], vcc")
    g.nop(7)
    g("ds_write_b128 v96, v[80:83]")
    g("s_mov_b64 exec, s[62:63]")
    g("s_waitcnt lgkmcnt(0)")
    g("s_barrier")
    g("ds_read_b128 v[16:19], v97")
    g("ds_read_b128 v[20:23], v97 offset:64")
    g("ds_read_b128 v[24:27], v97 offset:256")
    g("ds_read_b128 v[28:31], v97 offset:320")
    for t in range(2):
        for ct in range(2):
            b = 64 + 16 * t + 8 * ct // 2 * 1
            b = 64 + (t * 2 + ct) * 4
            g(f"ds_read_b64_tr_b16 v[{b}:{b+1}], v{102+ct} offset:{t*16384}")
            g(f"ds_read_b64_tr_b16 v[{b+2}:{b+3}], v{102+ct} offset:{t*16384+8192}")
    g("s_waitcnt lgkmcnt(8)")
    g("v_max3_f32 v32, v16, v17, v18")
    g("v_max3_f32 v33, v19, v20, v21")
    g("v_max3_f32 v34, v22, v23, v24")
    g("v_max3_f32 v35, v25, v26, v27")
    g("v_max3_f32 v32, v32, v28, v29")
    g("v_max3_f32 v33, v33, v30, v31")
    g("v_max3_f32 v32, v32, v33, v34")
    g("v_max_f32 v32, v32, v35")
    red_multi(g, "v_max_f32", [32], [33], ["q2", "p16", "p32"])
    g("v_mul_f32 v32, s14, v32")
    for i in range(16):
        g(f"v_fma_f32 v{16+i}, v{16+i}, s14, -v32")
    for i in range(16):
        g(f"v_exp_f32 v{16+i}, v{16+i}")
    g.nop(1)
    for i in range(8):
        g(f"v_cvt_pk_bf16_f32 v{40+i}, v{16+2*i}, v{17+2*i}")
    for i in range(8):
        g(f"v_add_f32 v{16+i}, v{16+i}, v{24+i}")
    for i in range(4):
        g(f"v_add_f32 v{16+i}, v{16+i}, v{20+i}")
    g("v_add_f32 v16, v16, v18")
    g("v_add_f32 v17, v17, v19")
    g("v_add_f32 v33, v16, v17")
    g("s_waitcnt lgkmcnt(0)")
    for ct in range(2):
        for t in range(2):
            b = 64 + (t * 2 + ct) * 4
            d = 48 + (ct * 2 + t) * 4
            g(f"v_mfma_f32_16x16x32_bf16 v[{d}:{d+3}], v[40:43], v[{b}:{b+3}], 0")
    red_multi(g, "v_add_f32", [33], [34], ["q2", "p16", "p32"])
    for t in (2, 3):
        g(f"s_waitcnt vmcnt({2 if t == 2 else 0})")
        g("s_barrier")
        if t == 3:
            stamp(3)
        for ct in range(2):
            b = 64 + (t * 2 + ct) * 4
            g(f"ds_read_b64_tr_b16 v[{b}:{b+1}], v{102+ct} offset:{t*16384}")
            g(f"ds_read_b64_tr_b16 v[{b+2}:{b+3}], v{102+ct} offset:{t*16384+8192}")
        for ct in range(2):
            b = 64 + (t * 2 + ct) * 4
            d = 48 + (ct * 2 + (t & 1)) * 4
            g(f"s_waitcnt lgkmcnt({2 if ct == 0 else 0})")
            g(f"v_mfma_f32_16x16x32_bf16 v[{d}:{d+3}], v[44:47], v[{b}:{b+3}], v[{d}:{d+3}]")
    g.nop(8)
    g("v_add_f32 v16, v48, v54")
    g("v_add_f32 v17, v49, v55")
    g("v_add_f32 v18, v56, v62")
    g("v_add_f32 v19, v57, v63")
    g("v_cndmask_b32 v108, v16, v17, s[58:59]")
    g("v_cndmask_b32 v109, v18, v19, s[58:59]")
    g("v_cndmask_b32 v108, v32, v108, s[56:57]")
    g("v_cndmask_b32 v109, v33, v109, s[56:57]")
    g("s_mov_b64 exec, s[60:61]")
    g("global_store_dwordx4 v104, v[108:111], s[42:43] sc1")
    g("s_mov_b64 exec, -1")
    stamp(4)
    if stamps:
        g("s_cmp_eq_u32 s3, 0")
        g("s_cbranch_scc0 L_end")
        stamp_flush([0, 1, 2, 3, 4])
    g("s_endpgm")

    g.label("L_aux")
    if prio:
        g(f"s_setprio {prio}")
    g("s_waitcnt lgkmcnt(0)")
    g("s_load_dwordx2 s[44:45], s[42:43], 0")
    g("s_cmp_eq_u32 s3, 8")
    g("s_cbranch_scc1 L_a0")
    g("s_cmp_eq_u32 s3, 9")
    g("s_cbranch_scc1 L_a1")
    g("s_waitcnt lgkmcnt(0)")
    g("s_add_u32 s44, s44, 1")
    g("s_addc_u32 s45, s45, 0")
    g("s_barrier")
    g("s_branch L_stage3")

    g.label("L_a0")
    g("v_and_b32 v2, 15, v0")
    g("v_lshrrev_b32 v3, 4, v0")
    g("v_lshrrev_b32 v4, 2, v2")
    g("v_lshl_add_u32 v4, v3, 3, v4")
    g("v_lshlrev_b32 v4, 5, v4")
    g("v_and_b32 v5, 3, v2")
    g("v_lshl_add_u32 v4, v5, 3, v4")
    g(f"v_add_u32 v4, {L_WQ}, v4")
    g("v_lshlrev_b32 v5, 4, v3")
    g(f"v_add_u32 v5, {L_X}, v5")
    g("s_lshl_b32 s6, s4, 7")
    g("s_lshl_b32 s7, s5, 2")
    g("s_add_u32 s6, s6, s7")
    g("v_add_u32 v6, s6, v3")
    g("v_lshlrev_b32 v6, 4, v6")
    g(f"v_add_u32 v6, {WS_MB1}, v6")
    g("v_cmp_eq_u32 s[46:47], 0, v2")
    g("s_waitcnt lgkmcnt(0)")
    g("s_add_u32 s44, s44, 1")
    g("s_addc_u32 s45, s45, 0")
    g("v_mov_b32 v14, s44")
    g("v_mov_b32 v15, s45")
    stamp(12)
    g("s_barrier")
    stamp(13)
    for s in range(14):
        g(f"ds_read_b64_tr_b16 v[{16+4*s}:{17+4*s}], v4 offset:{1024*s}")
        g(f"ds_read_b64_tr_b16 v[{18+4*s}:{19+4*s}], v4 offset:{1024*s+128}")
        g(f"ds_read_b128 v[{72+4*s}:{75+4*s}], v5 offset:{64*s}")
        if s >= 3:
            k = s - 3
            g("s_waitcnt lgkmcnt(9)")
            c = "0" if k == 0 else "v[8:11]"
            g(f"v_mfma_f32_16x16x32_bf16 v[8:11], v[{16+4*k}:{19+4*k}], v[{72+4*k}:{75+4*k}], {c}")
    for k in range(11, 14):
        g(f"s_waitcnt lgkmcnt({3*(13-k)})")
        g(f"v_mfma_f32_16x16x32_bf16 v[8:11], v[{16+4*k}:{19+4*k}], v[{72+4*k}:{75+4*k}], v[8:11]")
    g.nop(8)
    g("v_cvt_pk_bf16_f32 v12, v8, v9")
    g("v_cvt_pk_bf16_f32 v13, v10, v11")
    g("s_mov_b64 exec, s[46:47]")
    g("global_store_dwordx4 v6, v[12:15], s[42:43] sc1")
    g("s_mov_b64 exec, -1")
    stamp(5)
    g("s_lshl_b32 s6, s4, 11")
    g(f"s_add_u32 s6, s6, {WS_MB1}")
    g("v_lshlrev_b32 v6, 4, v0")
    g("v_add_u32 v6, s6, v6")
    g("v_lshlrev_b32 v7, 3, v0")
    g(f"v_add_u32 v7, {L_Q}, v7")
    g("s_mov_b32 s15, 0")
    g.label("L_pollq")
    g("global_load_dwordx4 v[16:19], v6, s[42:43] sc1")
    g("global_load_dwordx4 v[20:23], v6, s[42:43] offset:1024 sc1")
    g("s_add_u32 s15, s15, 1")
    g(f"s_cmp_gt_u32 s15, {SPIN_MAX}")
    g("s_cbranch_scc1 L_pollq_done")
    g("s_waitcnt vmcnt(0)")
    g("v_cmp_eq_u64 vcc, s[44:45], v[18:19]")
    g("v_cmp_eq_u64 s[46:47], v[22:23], s[44:45]")
    g("s_and_b64 s[46:47], s[46:47], vcc")
    g("s_cmp_eq_u64 s[46:47], exec")
    g("s_cbranch_scc0 L_pollq")
    g.label("L_pollq_done")
    g("s_waitcnt vmcnt(0)")
    g("ds_write_b64 v7, v[16:17]")
    g("ds_write_b64 v7, v[20:21] offset:512")
    stamp(6)
    g("s_branch L_stage3")

    g.label("L_a1")
    g("s_mul_i32 s6, s4, 28")
    g("s_add_u32 s6, s6, s5")
    g("s_cmp_lt_u32 s5, 28")
    g("s_cselect_b32 s6, s6, 0")
    g("s_cselect_b32 s13, 1.0, 0")
    g("s_lshl_b32 s7, s6, 4")
    g("s_add_u32 s8, s30, s7")
    g("s_addc_u32 s9, s31, 0")
    g("s_load_dwordx4 s[56:59], s[8:9], 0")
    g("s_mov_b32 s52, s32"); g("s_mov_b32 s53, s33"); g(f"s_mov_b32 s54, {1792*896}"); g("s_mov_b32 s55, 0x20000")
    g("v_min_u32 v6, 55, v0")
    g("v_lshlrev_b32 v6, 4, v6")
    g("s_mul_i32 s11, s6, 7168")
    g("s_add_u32 s12, s11, 3584")
    g("v_lshlrev_b32 v4, 4, v0")
    g(f"v_add_u32 v4, {L_W1}, v4")
    g("v_lshlrev_b32 v5, 1, v0")
    g(f"v_add_u32 v5, {L_X}, v5")
    g(f"v_add_u32 v7, {L_X}, v6")
    for k in range(8):
        g(f"v_mov_b32 v{8+k}, 0")
    g("s_mov_b32 s14, 0xffff0000")
    g("s_waitcnt lgkmcnt(0)")
    g("s_barrier")
    for k in range(8):
        g(f"buffer_load_dwordx4 v[{44+4*k}:{47+4*k}], v6, s[52:55], s11 offen offset:{(896*k) % 4096} nt" if 896 * k < 4096 else
          f"buffer_load_dwordx4 v[{44+4*k}:{47+4*k}], v6, s[52:55], s12 offen offset:{896*k-3584} nt")
    g("ds_read_b128 v[96:99], v7")
    g("ds_read_b128 v[100:103], v7 offset:1024")
    for i in range(7):
        g(f"ds_read_u16 v{80+i}, v5 offset:{128*i}")
        g(f"ds_read_b128 v[{16+4*i}:{19+4*i}], v4 offset:{1024*i}")
    g("s_waitcnt lgkmcnt(14)")
    g("v_mov_b32 v104, 0")
    for k in range(4):
        g(f"v_lshlrev_b32 v2, 16, v{96+k}")
        g(f"v_and_b32 v3, s14, v{96+k}")
        g(f"v_lshlrev_b32 v105, 16, v{100+k}")
        g(f"v_and_b32 v106, s14, v{100+k}")
        g("v_mul_f32 v2, v2, v105")
        g("v_mul_f32 v3, v3, v106")
        g("v_cvt_pk_bf16_f32 v2, v2, v3")
        g("v_lshlrev_b32 v3, 16, v2")
        g("v_and_b32 v2, s14, v2")
        g("v_add_f32 v104, v104, v3")
        g("v_add_f32 v104, v104, v2")
    g("v_cmp_gt_u32 vcc, 56, v0")
    g.nop(1)
    g("v_cndmask_b32 v104, 0, v104, vcc")
    for i in range(7):
        g(f"s_waitcnt lgkmcnt({12-2*i})")
        g(f"v_lshlrev_b32 v{80+i}, 16, v{80+i}")
        for k in range(4):
            g(f"v_lshlrev_b32 v2, 16, v{16+4*i+k}")
            g(f"v_and_b32 v3, s14, v{16+4*i+k}")
            g(f"v_fmac_f32 v{8+2*k}, v2, v{80+i}")
            g(f"v_fmac_f32 v{9+2*k}, v3, v{80+i}")
    red_multi(g, "v_add_f32", list(range(8, 16)) + [104], list(range(16, 25)), ["q1", "q2", "r4", "r8", "p16", "p32"])
    g("s_waitcnt lgkmcnt(0)")
    g("s_add_u32 s44, s44, 1")
    g("s_addc_u32 s45, s45, 0")
    g("v_cvt_pk_bf16_f32 v104, v104, v104")
    g("v_and_b32 v104, s14, v104")
    g("v_mul_f32 v104, 0xbfb8aa3b, v104")
    g("v_exp_f32 v104, v104")
    g.nop(1)
    g("v_add_f32 v104, 1.0, v104")
    g("v_rcp_f32 v104, v104")
    g.nop(1)
    g("v_cvt_pk_bf16_f32 v104, v104, v104")
    g("v_and_b32 v104, s14, v104")
    g("v_sub_f32 v105, 1.0, v104")
    g("v_cvt_pk_bf16_f32 v105, v105, v105")
    g("v_and_b32 v105, s14, v105")
    g(f"v_mov_b32 v2, {L_G}")
    g("ds_write_b64 v2, v[104:105]")
    g("v_mul_f32 v106, s13, v105")
    for k in range(4):
        g(f"v_cvt_pk_bf16_f32 v2, v{8+2*k}, v{9+2*k}")
        g(f"v_lshlrev_b32 v{8+2*k}, 16, v2")
        g(f"v_and_b32 v{9+2*k}, s14, v2")
        g(f"s_lshl_b32 s10, s{56+k}, 16")
        g(f"s_and_b32 s12, s{56+k}, s14")
        g(f"v_add_f32 v{8+2*k}, s10, v{8+2*k}")
        g(f"v_add_f32 v{9+2*k}, s12, v{9+2*k}")
        g(f"v_cvt_pk_bf16_f32 v2, v{8+2*k}, v{9+2*k}")
        g(f"v_lshlrev_b32 v{8+2*k}, 16, v2")
        g(f"v_and_b32 v{9+2*k}, s14, v2")
        g(f"v_max_f32 v{8+2*k}, 0, v{8+2*k}")
        g(f"v_max_f32 v{9+2*k}, 0, v{9+2*k}")
        g(f"v_mul_f32 v{8+2*k}, v{8+2*k}, v{8+2*k}")
        g(f"v_mul_f32 v{9+2*k}, v{9+2*k}, v{9+2*k}")
        g(f"v_cvt_pk_bf16_f32 v2, v{8+2*k}, v{9+2*k}")
        g(f"v_lshlrev_b32 v{8+2*k}, 16, v2")
        g(f"v_and_b32 v{9+2*k}, s14, v2")
        g(f"v_mul_f32 v{8+2*k}, v{8+2*k}, v106")
        g(f"v_mul_f32 v{9+2*k}, v{9+2*k}, v106")
    for k in range(8):
        g(f"v_mov_b32 v{16+k}, 0")
    for k in range(8):
        g(f"s_waitcnt vmcnt({7-k})")
        for q in range(4):
            g(f"v_lshlrev_b32 v2, 16, v{44+4*k+q}")
            g(f"v_and_b32 v3, s14, v{44+4*k+q}")
            g(f"v_fmac_f32 v{16+2*q}, v2, v{8+k}")
            g(f"v_fmac_f32 v{17+2*q}, v3, v{8+k}")
    g("v_lshlrev_b32 v2, 1, v6")
    g(f"v_add_u32 v2, {L_FB}, v2")
    g("ds_write_b128 v2, v[16:19]")
    g("ds_write_b128 v2, v[20:23] offset:16")

    g.label("L_stage3")
    g("s_waitcnt lgkmcnt(0)")
    g("s_barrier")
    g("s_lshr_b32 s6, s5, 4")
    g("s_lshl_b32 s7, s4, 1")
    g("s_add_u32 s6, s6, s7")
    g("s_and_b32 s7, s5, 15")
    g("s_lshl_b32 s8, s6, 8")
    g("s_lshr_b32 s9, s7, 1")
    g("s_lshl_b32 s9, s9, 5")
    g("s_add_u32 s8, s8, s9")
    g("s_and_b32 s9, s7, 1")
    g("s_lshl_b32 s9, s9, 3")
    g("s_add_u32 s8, s8, s9")
    g("s_mul_i32 s8, s8, 896")
    g("s_mov_b32 s48, s24"); g("s_mov_b32 s49, s25"); g(f"s_mov_b32 s50, {4096*896}"); g("s_mov_b32 s51, 0x20000")
    g("s_sub_u32 s9, s3, 8")
    g("s_lshl_b32 s9, s9, 6")
    g("v_add_u32 v2, s9, v0")
    g("v_min_u32 v2, 223, v2")
    g("v_lshlrev_b32 v3, 2, v2")
    for rr in range(16):
        ro = (rr % 8) * 896 + (rr // 8) * 16 * 896
        g(f"s_add_u32 s10, s8, {ro}")
        g(f"buffer_load_dword v{16+rr}, v3, s[48:51], s10 offen nt")
    g("s_lshl_b32 s10, s6, 4")
    g("s_add_u32 s10, s10, s7")
    g("s_lshl_b32 s10, s10, 12")
    g(f"s_add_u32 s10, s10, {WS_MB2}")
    g("v_lshlrev_b32 v4, 4, v0")
    g("v_add_u32 v4, s10, v4")
    g("s_lshl_b32 s10, s6, 9")
    g(f"s_add_u32 s10, s10, {WS_ST}")
    g("v_lshrrev_b32 v5, 3, v0")
    g("v_lshlrev_b32 v5, 4, v5")
    g("v_add_u32 v5, s10, v5")
    if mb3_reader:
        g("v_lshrrev_b32 v6, 1, v2")
        g("v_lshlrev_b32 v6, 8, v6")
        g("v_add_u32 v6, s2, v6")
        g("v_lshlrev_b32 v6, 5, v6")
        g("v_and_b32 v7, 1, v2")
        g("v_lshl_add_u32 v6, v7, 4, v6")
    else:
        g("s_mul_i32 s10, s2, 3584")
        g("v_lshlrev_b32 v6, 4, v2")
        g("v_add_u32 v6, s10, v6")
    g(f"v_add_u32 v6, {WS_MB3}, v6")
    g("v_lshlrev_b32 v7, 3, v2")
    g(f"v_add_u32 v7, {L_FB}, v7")
    g(f"v_mov_b32 v8, {L_G}")
    g("ds_read_b64 v[10:11], v7")
    g("ds_read_b64 v[12:13], v8")
    g("v_mov_b32 v114, s44")
    g("v_mov_b32 v115, s45")
    g("s_mov_b32 s14, 0xffff0000")
    g("s_barrier")
    g("s_barrier")
    g("s_barrier")
    g("s_waitcnt vmcnt(0)")
    for rr in range(16):
        g(f"v_lshlrev_b32 v{32+2*rr}, 16, v{16+rr}")
        g(f"v_and_b32 v{33+2*rr}, s14, v{16+rr}")
    stamp(7)
    g("s_mov_b32 s15, 0")
    g.label("L_poll2")
    if sleep2:
        g(f"s_sleep {sleep2}")
    for i in range(4):
        g(f"global_load_dwordx4 v[{64+4*i}:{67+4*i}], v4, s[42:43] offset:{1024*i} sc1")
    for i in range(4):
        g(f"global_load_dwordx4 v[{80+4*i}:{83+4*i}], v5, s[42:43] offset:{128*i} sc1")
    g("s_add_u32 s15, s15, 1")
    g(f"s_cmp_gt_u32 s15, {SPIN_MAX}")
    g("s_cbranch_scc1 L_poll2_done")
    g("s_waitcnt vmcnt(0)")
    g("v_cmp_eq_u64 s[46:47], v[66:67], s[44:45]")
    for i in range(1, 8):
        g(f"v_cmp_eq_u64 vcc, s[44:45], v[{66+4*i}:{67+4*i}]")
        g("s_and_b64 s[46:47], s[46:47], vcc")
    g("s_cmp_eq_u64 s[46:47], exec")
    g("s_cbranch_scc0 L_poll2")
    g.label("L_poll2_done")
    g("s_waitcnt vmcnt(0) lgkmcnt(0)")
    stamp(8)
    g("v_max3_f32 v96, v80, v84, v88")
    g("v_max_f32 v96, v96, v92")
    red_multi(g, "v_max_f32", [96], [97], ["r8", "p16", "p32"])
    for i in range(4):
        g(f"v_sub_f32 v{80+4*i}, v{80+4*i}, v96")
    for i in range(4):
        g(f"v_exp_f32 v{80+4*i}, v{80+4*i}")
    g.nop(1)
    g("v_mul_f32 v98, v80, v64")
    g("v_mul_f32 v99, v80, v65")
    g("v_mul_f32 v100, v80, v81")
    for i in range(1, 4):
        g(f"v_fmac_f32 v98, v{80+4*i}, v{64+4*i}")
        g(f"v_fmac_f32 v99, v{80+4*i}, v{65+4*i}")
        g(f"v_fmac_f32 v100, v{80+4*i}, v{81+4*i}")
    red_multi(g, "v_add_f32", [98, 99, 100], [101, 102, 103], ["r8", "p16", "p32"])
    g("v_rcp_f32 v100, v100")
    g.nop(1)
    g("v_mul_f32 v100, v100, v12")
    g("v_mul_f32 v98, v98, v100")
    g("v_mul_f32 v99, v99, v100")
    g.nop(1)
    for k in range(8):
        g(f"v_readlane_b32 s{48+k}, v98, {k}")
        g(f"v_readlane_b32 s{56+k}, v99, {k}")
    g.nop(1)
    g("v_mov_b32 v112, v10")
    g("v_mov_b32 v113, v11")
    for rr in range(16):
        g(f"v_fmac_f32 v112, s{48+rr}, v{32+2*rr}")
        g(f"v_fmac_f32 v113, s{48+rr}, v{33+2*rr}")
    g("s_cmp_eq_u32 s3, 11")
    g("s_cselect_b32 s47, 0, -1")
    g("s_mov_b32 s46, -1")
    g("s_mov_b64 exec, s[46:47]")
    g("global_store_dwordx4 v6, v[112:115], s[42:43] sc1")
    g("s_mov_b64 exec, -1")
    stamp(9)
    if stamps:
        g("s_cmp_eq_u32 s3, 8")
        g("s_cbranch_scc0 L_nost8")
        stamp_flush([5, 6, 7, 8, 9, 12, 13])
        g.label("L_nost8")
    g("s_cmp_eq_u32 s3, 11")
    g("s_cbranch_scc0 L_end")
    g("s_cmp_lt_u32 s2, 112")
    g("s_cbranch_scc0 L_end")

    g("v_and_b32 v3, 1, v0")
    if mb3_reader:
        g("s_lshl_b32 s6, s2, 13")
        g(f"s_add_u32 s6, s6, {WS_MB3}")
        g("v_lshlrev_b32 v4, 4, v0")
        g("v_add_u32 v4, s6, v4")
        step = 1024
    else:
        g("s_lshl_b32 s6, s2, 5")
        g(f"s_add_u32 s6, s6, {WS_MB3}")
        g("v_lshrrev_b32 v4, 1, v0")
        g("v_mul_u32_u24 v4, 3584, v4")
        g("v_lshl_add_u32 v4, v3, 4, v4")
        g("v_add_u32 v4, s6, v4")
        step = 32 * 3584
    for i in range(1, 8):
        g(f"v_add_u32 v{4+i}, {step*i}, v4")
    g("s_lshl_b32 s6, s2, 3")
    g("v_lshlrev_b32 v14, 2, v3")
    g("v_add_u32 v14, s6, v14")
    g("global_load_dword v15, v14, s[34:35]")
    g("s_mov_b32 s15, 0")
    g.label("L_poll3")
    if sleep2:
        g(f"s_sleep {sleep2}")
    for i in range(8):
        g(f"global_load_dwordx4 v[{64+4*i}:{67+4*i}], v{4+i}, s[42:43] sc1")
    g("s_add_u32 s15, s15, 1")
    g(f"s_cmp_gt_u32 s15, {SPIN_MAX}")
    g("s_cbranch_scc1 L_poll3_done")
    g("s_waitcnt vmcnt(0)")
    g("v_cmp_eq_u64 s[46:47], v[66:67], s[44:45]")
    for i in range(1, 8):
        g(f"v_cmp_eq_u64 vcc, s[44:45], v[{66+4*i}:{67+4*i}]")
        g("s_and_b64 s[46:47], s[46:47], vcc")
    g("s_cmp_eq_u64 s[46:47], exec")
    g("s_cbranch_scc0 L_poll3")
    g.label("L_poll3_done")
    g("s_waitcnt vmcnt(0)")
    stamp(10)
    for i in range(4):
        g(f"v_add_f32 v{64+4*i}, v{64+4*i}, v{80+4*i}")
        g(f"v_add_f32 v{65+4*i}, v{65+4*i}, v{81+4*i}")
    g("v_add_f32 v64, v64, v68"); g("v_add_f32 v65, v65, v69")
    g("v_add_f32 v72, v72, v76"); g("v_add_f32 v73, v73, v77")
    g("v_add_f32 v64, v64, v72"); g("v_add_f32 v65, v65, v73")
    red_multi(g, "v_add_f32", [64, 65], [66, 67], ["q2", "r4", "r8", "p16", "p32"])
    g("v_lshlrev_b32 v16, 16, v15")
    g("v_and_b32 v17, s14, v15")
    g("v_fmac_f32 v64, v16, v13")
    g("v_fmac_f32 v65, v17, v13")
    g("v_cvt_pk_bf16_f32 v64, v64, v65")
    g("s_mov_b64 exec, 3")
    g("global_store_dword v14, v64, s[38:39]")
    g("s_cmp_eq_u32 s2, 0")
    g("s_cbranch_scc0 L_noepoch")
    g("s_mov_b64 exec, 1")
    g("v_mov_b32 v2, 0")
    g("v_mov_b32 v4, s44")
    g("v_mov_b32 v5, s45")
    g("global_store_dwordx2 v2, v[4:5], s[42:43] sc1")
    g.label("L_noepoch")
    g("s_mov_b64 exec, -1")
    stamp(11)
    stamp_flush([10, 11])
    g.label("L_end")
    g("s_endpgm")

    tail = []
    tail.append('.section .rodata,"a"')
    tail.append(".p2align 6")
    tail.append(f".amdhsa_kernel {KN}")
    tail.append("  .amdhsa_next_free_vgpr 128")
    tail.append("  .amdhsa_next_free_sgpr 102")
    tail.append("  .amdhsa_accum_offset 128")
    tail.append("  .amdhsa_group_segment_fixed_size 0")
    tail.append("  .amdhsa_kernarg_size 112")
    tail.append("  .amdhsa_user_sgpr_count 2")
    tail.append("  .amdhsa_user_sgpr_kernarg_segment_ptr 1")
    tail.append("  .amdhsa_system_sgpr_workgroup_id_x 1")
    tail.append(".end_amdhsa_kernel")
    return "\n".join(hdr + g.L + tail) + "\n"


if __name__ == "__main__":
    ap = argparse.ArgumentParser()
    ap.add_argument("-o", default="gated_mix__sliding_block_cached__dense_activation_squared_relu__decode.s")
    ap.add_argument("--stamps", action="store_true")
    ap.add_argument("--inflight", type=int, default=4)
    ap.add_argument("--mb3w", action="store_true")
    ap.add_argument("--wnt", action="store_true")
    ap.add_argument("--prio", type=int, default=3)
    ap.add_argument("--sleep2", type=int, default=0)
    ap.add_argument("--nostream", action="store_true")
    a = ap.parse_args()
    open(a.o, "w").write(gen(inflight=a.inflight, stamps=a.stamps, mb3_reader=not a.mb3w, wnt=" nt" if a.wnt else "", nostream=a.nostream, prio=a.prio, sleep2=a.sleep2))
```
